```python
import torch

def _softmax(x, axis=-1):
    return torch.softmax(x, dim=axis)
def _gelu(x):
    return torch.nn.functional.gelu(x, approximate="tanh")
def _silu(x):
    return torch.nn.functional.silu(x)
def _sigmoid(x):
    return torch.sigmoid(x)
def _layernorm(x, axis=-1, eps=1e-5):
    m = x.mean(dim=axis, keepdim=True)
    v = x.var(dim=axis, keepdim=True, unbiased=False)
    return (x - m) / torch.sqrt(v + eps)
def _scatter_add(tgt, idx, src, axis=0):
    return tgt.clone().index_add_(axis, idx, src)
def _segment_sum(src, seg, n):
    out = torch.zeros((n,) + src.shape[1:], dtype=src.dtype)
    return out.index_add_(0, seg, src)
def _pad(x, pw):
    flat = tuple(v for pair in reversed(pw) for v in pair)
    return torch.nn.functional.pad(x, flat)

kernel_name = 'sequential_preLN__sliding_local_dilated__glu_gated_glu__prompt'

def setup_inputs():

    _w = (lambda a: (lambda t: t.to(torch.bfloat16) if t.is_floating_point() else t)(torch.as_tensor(a)))
    def _A_setup():
        B, S, D = 1, 2048, 1024
        return {
            "x": _w((lambda *s: torch.randn(*s, dtype=torch.bfloat16) * 0.05)(B, S, D)),
            "wqkv": _w((lambda *s: torch.randn(*s, dtype=torch.bfloat16) * 0.05)(D, 3 * D)),
            "wo": _w((lambda *s: torch.randn(*s, dtype=torch.bfloat16) * 0.05)(D, D)),
        }
    _A_in = _A_setup()

    def _B_setup():
        B, S, D, F = 1, 2048, 1024, 3584
        return {
            "x": _w((lambda *s: torch.randn(*s, dtype=torch.bfloat16) * 0.05)(B, S, D)),
            "w_gate": _w((lambda *s: torch.randn(*s, dtype=torch.bfloat16) * 0.05)(D, F)),
            "w_up": _w((lambda *s: torch.randn(*s, dtype=torch.bfloat16) * 0.05)(D, F)),
            "w_down": _w((lambda *s: torch.randn(*s, dtype=torch.bfloat16) * 0.05)(F, D)),
        }
    _B_in = _B_setup()

    return {
        "A_x": _A_in["x"],
        "A_wqkv": _A_in["wqkv"],
        "A_wo": _A_in["wo"],
        "B_x": _B_in["x"],
        "B_w_gate": _B_in["w_gate"],
        "B_w_up": _B_in["w_up"],
        "B_w_down": _B_in["w_down"],
    }

def reference(A_x, A_wqkv, A_wo, B_x, B_w_gate, B_w_up, B_w_down):
    def _A_ref(x, wqkv, wo):
        B, S, D = x.shape
        H = 32; Dh = D // H
        W, dil = 8, 2
        qkv = (lambda x, *d: x.permute(*d))((x @ wqkv).reshape(B, S, 3, H, Dh), 2, 0, 3, 1, 4)
        q, k, v = qkv[0], qkv[1], qkv[2]
        scale = Dh ** -0.5
        pos = torch.arange(S)
        off = torch.arange(W) * dil
        idx = pos[:, None] - off[None, :]
        mask = idx >= 0
        idx_c = torch.where(mask, idx, 0).reshape(-1)
        kg = k[:, :, idx_c, :].reshape(B, H, S, W, Dh)
        vg = v[:, :, idx_c, :].reshape(B, H, S, W, Dh)
        logits = torch.einsum("bhsd,bhswd->bhsw", q, kg) * scale
        logits = torch.where(mask[None, None, :, :], logits, -1e9)
        attn = _softmax(logits, axis=-1)
        o = torch.einsum("bhsw,bhswd->bhsd", attn, vg)
        return (lambda x, *d: x.permute(*d))(o, 0, 2, 1, 3).reshape(B, S, D) @ wo

    def _B_ref(x, w_gate, w_up, w_down):
        g = torch.einsum("bsd,df->bsf", x, w_gate)
        u = torch.einsum("bsd,df->bsf", x, w_up)
        h = _sigmoid(g) * u
        return torch.einsum("bsf,fd->bsd", h, w_down)

    x = A_x
    h = x + _A_ref(_layernorm(x, axis=-1), A_wqkv, A_wo)
    h2 = h + _B_ref(_layernorm(h, axis=-1), B_w_gate, B_w_up, B_w_down)
    return h2
```

```python
import re

_REG = re.compile(r'^(-|abs\()?([vas])(\d+|\[(\d+):(\d+)\])\)?$')

def regs_of(op):
    op = op.strip()
    if op in ('vcc', 'exec'):
        return [(op, 0)]
    if op in ('vcc_lo', 'vcc_hi'):
        return [('vcc', 0)]
    if op in ('exec_lo', 'exec_hi'):
        return [('exec', 0)]
    if op == 'm0':
        return [('m0', 0)]
    m = _REG.match(op)
    if not m:
        return []
    k = m.group(2)
    if m.group(4) is not None:
        return [(k, i) for i in range(int(m.group(4)), int(m.group(5)) + 1)]
    return [(k, int(m.group(3)))]

TRANS = ('v_exp_f32', 'v_log_f32', 'v_rcp_f32', 'v_rsq_f32', 'v_sqrt_f32', 'v_sin_f32', 'v_cos_f32')

class Ins:
    __slots__ = ('text', 'mn', 'ops', 'cls', 'wr', 'rd', 'srcc', 'srcab', 'passes', 'dpp', 'lds', 'wide', 'data')
    def __init__(self, text):
        self.text = text
        t = text.split(';')[0].strip()
        parts = t.split(None, 1)
        self.mn = mn = parts[0]
        rest = parts[1] if len(parts) > 1 else ''
        ops, depth, cur = [], 0, ''
        for ch in rest:
            if ch == '[': depth += 1
            if ch == ']': depth -= 1
            if ch == ',' and depth == 0:
                ops.append(cur.strip()); cur = ''
            else:
                cur += ch
        if cur.strip(): ops.append(cur.strip())
        mods = ''
        if ops:
            sp = ops[-1].split(None, 1)
            ops[-1] = sp[0]
            mods = sp[1] if len(sp) > 1 else ''
        self.ops = ops
        self.wr, self.rd, self.srcc, self.srcab, self.data = [], [], [], [], []
        self.passes = 0
        self.dpp = ('row_' in mods) or ('quad_perm' in mods) or mn.endswith('_dpp')
        self.lds = False
        self.wide = False
        R = regs_of
        if mn.startswith('v_mfma'):
            self.cls = 'mfma'
            self.passes = 8 if '32x32' in mn else 4
            self.wr = R(ops[0]); self.srcab = R(ops[1]) + R(ops[2]); self.srcc = R(ops[3])
            self.rd = self.srcab + self.srcc
        elif mn.startswith('v_'):
            self.cls = 'valu'
            base = mn.replace('_e32', '').replace('_e64', '').replace('_dpp', '')
            if base in TRANS: self.cls = 'trans'
            if base == 'v_nop':
                pass
            elif 'permlane' in mn and 'swap' in mn or base == 'v_swap_b32':
                self.wr = R(ops[0]) + R(ops[1]); self.rd = list(self.wr)
            elif base.startswith('v_cmp'):
                self.wr = R(ops[0]); self.rd = sum((R(o) for o in ops[1:]), [])
            elif '_co_' in base:
                self.wr = R(ops[0]) + R(ops[1]); self.rd = sum((R(o) for o in ops[2:]), [])
            else:
                self.wr = R(ops[0]); self.rd = sum((R(o) for o in ops[1:]), [])
                if base.startswith('v_fmac') or base.startswith('v_dot2c') or self.dpp:
                    self.rd += R(ops[0])
        elif mn.startswith('ds_'):
            self.cls = 'ds'
            if mn.startswith('ds_read') or 'permute' in mn or 'swizzle' in mn:
                self.wr = R(ops[0]); self.rd = sum((R(o) for o in ops[1:]), [])
            else:
                self.rd = sum((R(o) for o in ops), [])
        elif mn.startswith('buffer_') or mn.startswith('global_'):
            self.cls = 'vmem'
            allm = ' ' + mods + ' '
            self.lds = ' lds ' in allm or '_lds_' in mn
            if self.lds:
                self.rd = sum((R(o) for o in ops), []) + [('m0', 0)]
            elif 'load' in mn:
                self.wr = R(ops[0]); self.rd = sum((R(o) for o in ops[1:]), [])
            else:
                self.rd = sum((R(o) for o in ops), [])
                d = ops[0] if mn.startswith('buffer_') else ops[1]
                self.data = R(d)
                self.wide = mn.endswith('x4') or mn.endswith('x3')
        elif mn.startswith('s_'):
            self.cls = 'salu'
            if mn.startswith('s_cmp') or mn.startswith('s_cbranch') or mn in ('s_branch', 's_waitcnt', 's_barrier', 's_nop', 's_endpgm', 's_setprio', 's_sleep'):
                self.rd = sum((R(o) for o in ops), [])
            else:
                self.wr = R(ops[0]); self.rd = sum((R(o) for o in ops[1:]), [])
                if 'saveexec' in mn: self.wr += [('exec', 0)]
        else:
            raise ValueError('unknown instruction: ' + text)

    def states(self):
        if self.mn == 's_nop':
            return int(self.ops[0], 0) + 1
        return 1


class Haz:
    def __init__(self):
        self.pos = 0
        self.w = {}
        self.cread = {}
        self.sdata = {}
    def copy(self):
        h = Haz(); h.pos = self.pos; h.w = dict(self.w); h.cread = dict(self.cread); h.sdata = dict(self.sdata); return h
    def need(self, ins):
        n = 0
        def req(p, d):
            nonlocal n
            gap = self.pos - p - 1
            if gap < d: n = max(n, d - gap)
        isvalu = ins.cls in ('valu', 'trans')
        for r in ins.rd:
            if r not in self.w: continue
            p, c, pi = self.w[r]
            pv = c in ('valu', 'trans')
            if r[0] in 'va' and len(r[0]) == 1:
                if pv and ins.cls == 'mfma': req(p, 2)
                if c == 'mfma':
                    big = 12 if pi.passes == 8 else 8
                    if ins.cls == 'mfma':
                        if r in ins.srcab: req(p, big)
                        elif r in ins.srcc:
                            if not (ins.srcc == pi.wr and ins.passes == pi.passes): req(p, big - 2)
                    else:
                        req(p, big)
                if pv and isvalu:
                    if ins.mn.startswith('v_readfirstlane') or ins.mn.startswith('v_readlane'): req(p, 1)
                    if ins.dpp or 'permlane' in ins.mn: req(p, 2)
                    if c == 'trans' and ins.cls != 'trans': req(p, 1)
                if c == 'trans' and ins.cls in ('ds', 'vmem'): req(p, 1)
            elif r[0] in ('s', 'vcc'):
                if pv:
                    if isvalu: req(p, 2)
                    if ins.cls == 'vmem': req(p, 5)
                    if ins.cls == 'salu': req(p, 1)
            elif r[0] == 'm0':
                if c == 'salu' and ins.lds: req(p, 1)
        for r in ins.wr:
            if r in self.w:
                p, c, pi = self.w[r]
                if c == 'mfma' and ins.cls != 'mfma':
                    req(p, 12 if pi.passes == 8 else 8)
                if c == 'mfma' and ins.cls == 'mfma' and r not in ins.srcc:
                    req(p, 12 if pi.passes == 8 else 8)
            if isvalu and r in self.cread:
                p, ps = self.cread[r]
                req(p, 7 if ps == 8 else 3)
            if r in self.sdata:
                req(self.sdata[r], 2)
        return n
    def step(self, ins):
        for r in ins.wr:
            self.w[r] = (self.pos, ins.cls, ins)
        if ins.cls == 'mfma':
            for r in ins.srcc: self.cread[r] = (self.pos, ins.passes)
        if ins.wide:
            for r in ins.data: self.sdata[r] = self.pos
        self.pos += ins.states()


class Kernel:
    def __init__(self, name):
        self.name = name
        self.items = []
    def e(self, *lines):
        for l in lines:
            for s in l.split('\n'):
                s = s.strip()
                if s: self.items.append(s)
    def label(self, l): self.items.append(l + ':')
    def c(self, s): self.items.append('; ' + s)

    def finalize(self):
        out = []
        h = Haz()
        labels = {}
        pend = {}
        parsed = []
        for it in self.items:
            if it.startswith(';') or it.startswith('.'):
                parsed.append((it, None))
            elif it.endswith(':'):
                parsed.append((it, 'label'))
            else:
                parsed.append((it, Ins(it)))
        nops = 0
        maxv = maxa = maxs = -1
        extra = []
        for idx, (txt, ins) in enumerate(parsed):
            if ins is None:
                out.append('    ' + txt); continue
            if ins == 'label':
                lab = txt[:-1]
                labels[lab] = len(out)
                out.append(txt)
                for hh in pend.pop(lab, []):
                    extra.append([hh, 24])
                continue
            n = h.need(ins)
            for ex in extra: n = max(n, ex[0].need(ins))
            while n > 0:
                k = min(n, 16)
                nop = Ins('s_nop %d' % (k - 1))
                out.append('    s_nop %d' % (k - 1)); h.step(nop); nops += 1
                for ex in extra: ex[0].step(nop)
                n -= k
            out.append('    ' + txt)
            h.step(ins)
            for ex in extra:
                ex[0].step(ins); ex[1] -= 1
            extra = [ex for ex in extra if ex[1] > 0]
            for k, i in ins.wr + ins.rd:
                if k == 'v': maxv = max(maxv, i)
                if k == 'a': maxa = max(maxa, i)
                if k == 's': maxs = max(maxs, i)
            if ins.mn.startswith('s_cbranch') or ins.mn == 's_branch':
                tgt = ins.ops[0]
                if tgt in labels:
                    hh = h.copy(); cnt = 0
                    for l in out[labels[tgt] + 1:]:
                        l = l.strip()
                        if l.startswith(';') or l.endswith(':') or l.startswith('.'): continue
                        i2 = Ins(l)
                        nn = hh.need(i2)
                        if nn > 0:
                            raise RuntimeError('hazard across back-edge to %s at "%s" needs %d' % (tgt, l, nn))
                        hh.step(i2); cnt += 1
                        if cnt > 30: break
                else:
                    pend.setdefault(tgt, []).append(h.copy())
        self.maxv, self.maxa, self.maxs, self.nops = maxv, maxa, maxs, nops
        return out

    def text(self):
        body = self.finalize()
        n = self.name
        hdr = ['.globl %s' % n, '.p2align 8', '.type %s,@function' % n, n + ':']
        return '\n'.join(hdr + body) + '\n'

    def descriptor(self):
        acc = ((self.maxv + 1) + 3) // 4 * 4
        nfv = acc + self.maxa + 1 if self.maxa >= 0 else self.maxv + 1
        return '\n'.join([
            '.p2align 6',
            '.amdhsa_kernel %s' % self.name,
            '  .amdhsa_next_free_vgpr %d' % nfv,
            '  .amdhsa_next_free_sgpr %d' % max(self.maxs + 1, 16),
            '  .amdhsa_accum_offset %d' % acc,
            '  .amdhsa_group_segment_fixed_size 0',
            '  .amdhsa_kernarg_size 80',
            '  .amdhsa_user_sgpr_count 2',
            '  .amdhsa_user_sgpr_kernarg_segment_ptr 1',
            '  .amdhsa_system_sgpr_workgroup_id_x 1',
            '.end_amdhsa_kernel', ''])


class Alloc:
    def __init__(self, kind, start=0, limit=256):
        self.kind, self.n, self.limit = kind, start, limit
    def get(self, cnt=1, align=1):
        self.n = (self.n + align - 1) // align * align
        r = self.n
        self.n += cnt
        assert self.n <= self.limit, 'out of %s registers' % self.kind
        return r

def rr(kind, base, cnt):
    return '%s%d' % (kind, base) if cnt == 1 else '%s[%d:%d]' % (kind, base, base + cnt - 1)
def v(b, c=1): return rr('v', b, c)
def a(b, c=1): return rr('a', b, c)
def s(b, c=1): return rr('s', b, c)

def weave(mf, fill):
    out = list(fill.get(-1, []))
    for i, m in enumerate(mf):
        out.append(m)
        out += fill.get(i, [])
    return out
```

```python
from asmlib import *
import struct
MF = 'v_mfma_f32_16x16x32_bf16'
FO = 0x0
SS, MX, RM = 0x1A00000, 0x1A20000, 0x1A24000
KSTR = 131072
LOG2E = 1.4426950408889634
def f32(x): return '0x%08x' % struct.unpack('<I', struct.pack('<f', x))[0]

def gen_p1():
    from gen import srd, head, xlane_reduce, CFG
    k = Kernel('p1_kernel')
    END = 'L_p1_end'
    STG = 43008; XB = 18432
    SCR = 3 * STG
    L_SS, L_SM = SCR, SCR + 1152
    L_NM, L_RS = SCR + 2304, SCR + 2304 + 576
    L_CS = SCR + 3456
    L_EX = SCR + 4224
    lds_bytes = L_EX + 4096
    head(k, END)
    k.e('s_load_dwordx4 s[4:7], s[0:1], 0', 's_load_dwordx2 s[8:9], s[0:1], 16', 's_load_dwordx2 s[10:11], s[0:1], 72')
    V = Alloc('v', 0)
    vtid = V.get(); vl = V.get(); vt = V.get(); vt2 = V.get(); vt3 = V.get(); vtt = V.get(); vg = V.get()
    vDX = V.get(5); vDW = V.get(2)
    vB = V.get(8)
    vA = V.get(4)
    vrm = V.get(2)
    vone = V.get(4, 4)
    vQ = V.get(32, 4); vK = V.get(32, 4); vV = V.get(32, 4)
    vH = V.get(12, 4)
    vG = V.get(16, 4); vS = V.get(16, 4); vGH = V.get(4, 4)
    vP = V.get(64, 4)
    sw, si, sj, st, st2, st3, smi, shd = 12, 13, 14, 15, 16, 17, 18, 19
    sX, sW, sO, sD, sWo = 20, 24, 28, 32, 36
    skx, skw0, skw1, skw2, scur, snxt, sld, sit, sm0x, sm0w, sm0h = 40, 41, 42, 43, 44, 45, 46, 47, 48, 49, 50
    shm = 52
    sm = 54
    sc = 64
    def XF(c, f): return a(c * 44 + f * 4, 4)
    def WF(c, seg, sl): return a(c * 44 + 20 + (seg * 2 + sl) * 4, 4)

    k.e('v_lshrrev_b32 v%d, 6, v0' % vt, 'v_and_b32 v%d, 63, v0' % vl, 'v_readfirstlane_b32 s%d, v%d' % (sw, vt))
    k.e('s_and_b32 s%d, s2, 1' % si, 's_lshl_b32 s%d, s%d, 3' % (si, si), 's_lshr_b32 s%d, s2, 3' % st,
        's_and_b32 s%d, s%d, 7' % (st2, st), 's_add_u32 s%d, s%d, s%d' % (si, si, st2),
        's_lshr_b32 s%d, s%d, 3' % (sj, st), 's_and_b32 s%d, s2, 6' % st2, 's_lshl_b32 s%d, s%d, 1' % (st2, st2),
        's_add_u32 s%d, s%d, s%d' % (sj, sj, st2),
        's_lshr_b32 s%d, s%d, 1' % (smi, sw), 's_and_b32 s%d, s%d, 1' % (shd, sw))
    k.e('v_and_b32 v%d, 15, v%d' % (vtt, vl), 'v_lshrrev_b32 v%d, 4, v%d' % (vg, vl))
    k.e('s_lshl_b32 s%d, s%d, 7' % (st, si), 's_lshl_b32 s%d, s%d, 6' % (st2, shd), 's_add_u32 s%d, s%d, s%d' % (st, st, st2),
        's_add_u32 s%d, s%d, s%d' % (st, st, smi), 's_lshl_b32 s%d, s%d, 11' % (st, st),
        'v_lshrrev_b32 v%d, 3, v%d' % (vt, vl), 'v_lshlrev_b32 v%d, 12, v%d' % (vt2, vt),
        'v_and_b32 v%d, 7, v%d' % (vt3, vl), 'v_xor_b32 v%d, v%d, v%d' % (vt3, vt3, vg),
        'v_lshl_add_u32 v%d, v%d, 4, v%d' % (vt2, vt3, vt2), 'v_add_u32 v%d, s%d, v%d' % (vDX, st, vt2))
    k.e('v_xor_b32 v%d, 64, v%d' % (vDX + 1, vDX), 'v_add_u32 v%d, 0x8000, v%d' % (vDX + 1, vDX + 1),
        'v_add_u32 v%d, 0x10000, v%d' % (vDX + 2, vDX), 'v_add_u32 v%d, 0x10000, v%d' % (vDX + 3, vDX + 1))
    k.e('s_lshl_b32 s%d, s%d, 7' % (st, si), 's_sub_i32 s%d, s%d, 16' % (st, st), 's_max_i32 s%d, s%d, 0' % (st, st),
        's_lshl_b32 s%d, s%d, 2' % (st2, sw), 's_add_u32 s%d, s%d, s%d' % (st, st, st2), 's_lshl_b32 s%d, s%d, 11' % (st, st),
        's_lshl_b32 s%d, s%d, 1' % (st2, sw),
        'v_add_u32 v%d, s%d, v%d' % (vt3, st2, vg), 'v_and_b32 v%d, 7, v%d' % (vt3, vt3), 'v_and_b32 v%d, 7, v%d' % (vt2, vl),
        'v_xor_b32 v%d, v%d, v%d' % (vt3, vt3, vt2), 'v_lshlrev_b32 v%d, 11, v%d' % (vt2, vt),
        'v_lshl_add_u32 v%d, v%d, 4, v%d' % (vt2, vt3, vt2), 'v_add_u32 v%d, s%d, v%d' % (vDX + 4, st, vt2))
    k.e('s_cmp_eq_u32 s%d, 0' % sw, 's_cselect_b32 s%d, 0xffffff00, -1' % shm, 's_mov_b32 s%d, 0' % (shm + 1))
    k.e('s_mul_i32 s%d, s%d, %d' % (st, sw, 16 * 6144), 's_lshl_b32 s%d, s%d, 7' % (st2, sj), 's_add_u32 s%d, s%d, s%d' % (st, st, st2),
        'v_mul_u32_u24 v%d, 6144, v%d' % (vt2, vt), 'v_and_b32 v%d, 1, v%d' % (vt3, vg), 'v_lshlrev_b32 v%d, 1, v%d' % (vt3, vt3),
        'v_and_b32 v%d, 7, v%d' % (vt, vl), 'v_xor_b32 v%d, v%d, v%d' % (vt3, vt3, vt),
        'v_lshl_add_u32 v%d, v%d, 4, v%d' % (vt2, vt3, vt2), 'v_add_u32 v%d, s%d, v%d' % (vDW, st, vt2),
        'v_xor_b32 v%d, 64, v%d' % (vDW + 1, vDW), 'v_add_u32 v%d, %d, v%d' % (vDW + 1, 8 * 6144, vDW + 1))
    k.e('s_mov_b32 s%d, 0' % skx, 's_mov_b32 s%d, 0' % skw0, 's_mov_b32 s%d, 2048' % skw1, 's_mov_b32 s%d, 4096' % skw2,
        's_lshl_b32 s%d, s%d, 12' % (sm0x, sw), 's_lshl_b32 s%d, s%d, 11' % (sm0w, sw), 's_add_u32 s%d, s%d, %d' % (sm0w, sm0w, XB),
        's_lshl_b32 s%d, s%d, 9' % (sm0h, sw), 's_add_u32 s%d, s%d, 16384' % (sm0h, sm0h))
    k.e('s_waitcnt lgkmcnt(0)')
    srd(k, sX, 4, 0, 2048 * 2048)
    srd(k, sW, 6, 0, 1024 * 6144)
    srd(k, sWo, 8, 0, 1024 * 2048)
    srd(k, sO, 10, FO, 32 * KSTR)
    srd(k, sD, 10, SS, RM + 4096 - SS)
    k.e('s_lshl_b32 s%d, s2, 2' % st, 's_add_u32 s%d, s%d, s%d' % (st, st, sw), 's_lshl_b32 s%d, s%d, 11' % (st, st),
        'v_lshlrev_b32 v%d, 4, v%d' % (vt, vl),
        'buffer_load_dwordx4 %s, v%d, s[%d:%d], s%d offen' % (v(vP, 4), vt, sWo, sWo + 3, st),
        'buffer_load_dwordx4 %s, v%d, s[%d:%d], s%d offen offset:1024' % (v(vP + 4, 4), vt, sWo, sWo + 3, st))

    def dma_ops():
        ops = []
        for seg in range(3):
            for q in range(2):
                ops.append(['s_add_u32 s%d, s%d, %d' % (st, sm0w, seg * 8192 + q * 1024), 's_add_u32 m0, s%d, s%d' % (st, sld),
                            'buffer_load_dwordx4 v%d, s[%d:%d], s%d offen lds' % (vDW + q, sW, sW + 3, skw0 + seg)])
        for q in range(4):
            ops.append(['s_add_u32 s%d, s%d, %d' % (st, sm0x, q * 1024), 's_add_u32 m0, s%d, s%d' % (st, sld),
                        'buffer_load_dwordx4 v%d, s[%d:%d], s%d offen lds' % (vDX + q, sX, sX + 3, skx)])
        ops.append(['s_add_u32 m0, s%d, s%d' % (sm0h, sld), 's_mov_b64 exec, s[%d:%d]' % (shm, shm + 1),
                    'buffer_load_dwordx4 v%d, s[%d:%d], s%d offen lds' % (vDX + 4, sX, sX + 3, skx), 's_mov_b64 exec, -1'])
        ops.append(['s_add_u32 s%d, s%d, 128' % (skx, skx)] +
                   ['s_add_u32 s%d, s%d, %d' % (skw0 + i, skw0 + i, 64 * 6144) for i in range(3)] +
                   ['s_cmp_ge_u32 s%d, 2048' % skx, 's_cselect_b32 s%d, 0, s%d' % (sX + 2, sX + 2)])
        return ops
    for stg in range(3):
        k.e('s_mov_b32 s%d, %d' % (sld, stg * STG))
        for op in dma_ops(): k.e(*op)
    for r in range(4): k.e('v_mov_b32 v%d, 0x3f803f80' % (vone + r))
    k.e('v_lshlrev_b32 v%d, 4, v%d' % (vt, vl), 's_mov_b64 exec, 0xff')
    k.e('ds_write_b128 v%d, %s offset:16384' % (vt, v(vone, 4)), 'ds_write_b128 v%d, %s offset:%d' % (vt, v(vone, 4), STG + 16384),
        'v_add_u32 v%d, %d, v%d' % (vt, 2 * STG, vt), 'ds_write_b128 v%d, %s offset:16384' % (vt, v(vone, 4)), 's_mov_b64 exec, -1')
    k.e('v_lshrrev_b32 v%d, 1, v%d' % (vt, vtt), 'v_xor_b32 v%d, v%d, v%d' % (vt, vt, vg),
        's_lshl_b32 s%d, s%d, 2' % (st, shd), 'v_xor_b32 v%d, s%d, v%d' % (vt, st, vt),
        'v_lshlrev_b32 v%d, 7, v%d' % (vt2, vtt), 'v_lshl_add_u32 v%d, v%d, 4, v%d' % (vt2, vt, vt2),
        'v_add_u32 v%d, 16384, v%d' % (vB + 1, vt2), 's_lshl_b32 s%d, s%d, 13' % (st, smi), 'v_add_u32 v%d, s%d, v%d' % (vB, st, vt2),
        'v_xor_b32 v%d, 64, v%d' % (vB + 4, vB), 'v_xor_b32 v%d, 64, v%d' % (vB + 5, vB + 1))
    k.e('v_lshrrev_b32 v%d, 2, v%d' % (vt, vtt), 'v_lshl_add_u32 v%d, v%d, 3, v%d' % (vt, vg, vt), 'v_lshlrev_b32 v%d, 7, v%d' % (vt, vt),
        'v_and_b32 v%d, 3, v%d' % (vt2, vtt), 'v_lshl_add_u32 v%d, v%d, 3, v%d' % (vt, vt2, vt),
        'v_lshrrev_b32 v%d, 3, v%d' % (vt2, vtt), 'v_and_b32 v%d, 1, v%d' % (vt3, vg), 'v_lshl_add_u32 v%d, v%d, 1, v%d' % (vt2, vt3, vt2),
        's_lshl_b32 s%d, s%d, 1' % (st, shd), 's_add_u32 s%d, s%d, s%d' % (st, st, smi), 'v_xor_b32 v%d, s%d, v%d' % (vt2, st, vt2),
        'v_lshl_add_u32 v%d, v%d, 5, v%d' % (vt, vt2, vt),
        's_lshl_b32 s%d, s%d, 12' % (st, shd), 'v_xor_b32 v%d, s%d, v%d' % (vt, st, vt),
        'v_xor_b32 v%d, 32, v%d' % (vt2, vt),
        'v_add_u32 v%d, %d, v%d' % (vB + 2, XB, vt), 'v_add_u32 v%d, %d, v%d' % (vB + 3, XB, vt2),
        'v_xor_b32 v%d, 0x1000, v%d' % (vt, vt), 'v_xor_b32 v%d, 0x1000, v%d' % (vt2, vt2),
        'v_add_u32 v%d, %d, v%d' % (vB + 6, XB, vt), 'v_add_u32 v%d, %d, v%d' % (vB + 7, XB, vt2))
    for r in range(vQ, vGH + 4): k.e('v_mov_b32 v%d, 0' % r)
    k.e('s_waitcnt vmcnt(33)')
    k.e('v_mov_b32 v%d, 0' % vrm, 'v_mov_b32 v%d, 0' % (vrm + 1))
    for r in range(8):
        k.e('v_lshlrev_b32 v%d, 16, v%d' % (vt, vP + r), 'v_and_b32 v%d, 0xffff0000, v%d' % (vt2, vP + r),
            'v_add_f32 v%d, v%d, v%d' % (vrm, vrm, vt), 'v_add_f32 v%d, v%d, v%d' % (vrm + 1, vrm + 1, vt2))
    k.e('v_add_f32 v%d, v%d, v%d' % (vrm, vrm, vrm + 1))
    for sh in (1, 2, 4, 8):
        k.e('v_add_f32_dpp v%d, v%d, v%d row_ror:%d row_mask:0xf bank_mask:0xf' % (vrm, vrm, vrm, sh))
    xlane_reduce(k, 'v_add_f32', [vrm], [vrm + 1])
    k.e('v_mul_f32 v%d, %s, v%d' % (vrm, f32(1.0 / 1024), vrm), 'v_cvt_pk_bf16_f32 v%d, v%d, v%d' % (vrm + 1, vrm, vrm),
        'v_and_b32 v%d, 0xffff0000, v%d' % (vt, vrm + 1), 'v_sub_f32 v%d, v%d, v%d' % (vrm, vrm, vt),
        'v_cvt_pk_bf16_f32 v%d, v%d, v%d' % (vrm, vrm, vrm))

    def reads(c):
        r = []
        for seg in range(3):
            for sl in range(2):
                d = c * 44 + 20 + (seg * 2 + sl) * 4
                r += ['ds_read_b64_tr_b16 %s, v%d offset:%d' % (a(d, 2), vA + 2 + sl, seg * 8192),
                      'ds_read_b64_tr_b16 %s, v%d offset:%d' % (a(d + 2, 2), vA + 2 + sl, seg * 8192 + 512)]
            if seg == 0:
                r += ['ds_read_b128 %s, v%d offset:%d' % (XF(c, f), vA, f * 2048) for f in range(4)]
                r += ['ds_read_b128 %s, v%d' % (XF(c, 4), vA + 1)]
        return r
    def addrs(c, sreg):
        return ['v_add_u32 v%d, s%d, v%d' % (vA + i, sreg, vB + 4 * c + i) for i in range(4)]
    def mfmas(c):
        m = []
        for seg, base in ((0, vQ), (1, vK), (2, vV)):
            for sl in range(2):
                for f in range(4):
                    d = v(base + (sl * 4 + f) * 4, 4)
                    A_, B_ = (WF(c, seg, sl), XF(c, f)) if seg < 2 else (XF(c, f), WF(c, seg, sl))
                    m.append('%s %s, %s, %s, %s' % (MF, d, A_, B_, d))
                if sl == 0:
                    d = v(vH + seg * 4, 4)
                    A_, B_ = (WF(c, seg, 0), XF(c, 4)) if seg < 2 else (XF(c, 4), WF(c, seg, 0))
                    m.append('%s %s, %s, %s, %s' % (MF, d, A_, B_, d))
        for f in range(4):
            if c == 0:
                d = v(vG + f * 4, 4); m.append('%s %s, %s, %s, %s' % (MF, d, XF(c, f), XF(c, f), d))
            else:
                d = v(vS + f * 4, 4); m.append('%s %s, %s, %s, %s' % (MF, d, v(vone, 4), XF(c, f), d))
        if c == 0:
            d = v(vGH, 4); m.append('%s %s, %s, %s, %s' % (MF, d, XF(c, 4), XF(c, 4), d))
        return m

    k.e('s_mov_b32 s%d, 0' % scur, 's_mov_b32 s%d, %d' % (snxt, STG), 's_mov_b32 s%d, 16' % sit)
    k.e('s_waitcnt vmcnt(22) lgkmcnt(0)', 's_barrier')
    k.e(*addrs(0, scur)); k.e(*reads(0))
    k.label('L_p1_loop')
    fill = {}
    fill[-1] = ['s_waitcnt lgkmcnt(0)']
    ad = addrs(1, scur); fill[0] = ad[:2]; fill[1] = ad[2:]
    for i, r in enumerate(reads(1)): fill.setdefault(2 + i, []).append(r)
    k.e(*weave(mfmas(0), fill))
    fill = {}
    fill[-1] = ['s_waitcnt vmcnt(11) lgkmcnt(0)', 's_barrier']
    ad = addrs(0, snxt); fill[0] = ad[:2] ; fill[1] = ad[2:] + ['s_mov_b32 s%d, s%d' % (sld, scur)]
    for i, r in enumerate(reads(0)): fill.setdefault(2 + i, []).append(r)
    pos = 2
    for op in dma_ops():
        fill.setdefault(pos, []).extend(op); pos += 2
    fill.setdefault(28, []).extend(['s_mov_b32 s%d, s%d' % (scur, snxt), 's_add_u32 s%d, s%d, %d' % (snxt, snxt, STG),
                                    's_cmp_eq_u32 s%d, %d' % (snxt, 3 * STG), 's_cselect_b32 s%d, 0, s%d' % (snxt, snxt)])
    fill.setdefault(29, []).extend(['s_sub_u32 s%d, s%d, 1' % (sit, sit), 's_cmp_lg_u32 s%d, 0' % sit])
    k.e(*weave(mfmas(1), fill))
    k.e('s_cbranch_scc1 L_p1_loop')

    k.c('epilogue: statistics')
    m1, m2, m3, mdg, mt0 = sm, sm + 2, sm + 4, sm + 6, sm + 8
    k.e('v_and_b32 v%d, 3, v%d' % (vt, vtt), 'v_lshrrev_b32 v%d, 2, v%d' % (vt2, vtt),
        'v_cmp_eq_u32 s[%d:%d], 1, v%d' % (m1, m1 + 1, vt), 'v_cmp_eq_u32 s[%d:%d], 2, v%d' % (m2, m2 + 1, vt),
        'v_cmp_eq_u32 s[%d:%d], 3, v%d' % (m3, m3 + 1, vt), 'v_cmp_eq_u32 s[%d:%d], v%d, v%d' % (mdg, mdg + 1, vt2, vg),
        'v_cmp_eq_u32 s[%d:%d], 0, v%d' % (mt0, mt0 + 1, vtt))
    k.e('s_mul_i32 s%d, s%d, 576' % (st, shd), 's_add_u32 s%d, s%d, %d' % (st, st, SCR), 'v_lshlrev_b32 v%d, 2, v%d' % (vt, vtt),
        'v_add_u32 v%d, s%d, v%d' % (vt, st, vt), 's_lshl_b32 s%d, s%d, 8' % (st, smi), 'v_add_u32 v%d, s%d, v%d' % (vt2, st, vt))
    k.e('s_waitcnt lgkmcnt(0)')
    tiles = [vG + f * 4 for f in range(4)] + [vGH]
    for i, g in enumerate(tiles):
        k.e('v_cndmask_b32 v%d, v%d, v%d, s[%d:%d]' % (vP + i, g, g + 1, m1, m1 + 1),
            'v_cndmask_b32 v%d, v%d, v%d, s[%d:%d]' % (vP + i, vP + i, g + 2, m2, m2 + 1),
            'v_cndmask_b32 v%d, v%d, v%d, s[%d:%d]' % (vP + i, vP + i, g + 3, m3, m3 + 1))
    k.e('s_mov_b64 exec, s[%d:%d]' % (mdg, mdg + 1))
    for f in range(4):
        k.e('ds_write_b32 v%d, v%d offset:%d' % (vt2, vP + f, f * 64), 'ds_write_b32 v%d, v%d offset:%d' % (vt2, vS + f * 4, 1152 + f * 64))
    k.e('ds_write_b32 v%d, v%d offset:512' % (vt, vP + 4))
    k.e('s_mov_b64 exec, -1',
        's_lshl_b32 s%d, s%d, 1' % (st, shd), 's_add_u32 s%d, s%d, s%d' % (st, st, smi), 's_lshl_b32 s%d, s%d, 6' % (st, st),
        's_add_u32 s%d, s%d, %d' % (st, st, L_CS),
        'v_lshlrev_b32 v%d, 2, v%d' % (vt3, vtt), 'v_add_u32 v%d, s%d, v%d' % (vt3, st, vt3),
        'v_lshlrev_b32 v%d, 4, v%d' % (vt2, vg), 'v_add_u32 v%d, s%d, v%d' % (vt2, st, vt2),
        's_mov_b64 exec, 0xffff',
        'ds_write_b32 v%d, v%d offset:%d' % (vt, vGH, 1152 + 512), 'ds_write_b32 v%d, v%d offset:512' % (vt3, vH + 8),
        's_mov_b64 exec, s[%d:%d]' % (mt0, mt0 + 1),
        'ds_write_b128 v%d, %s' % (vt2, v(vH, 4)), 'ds_write_b128 v%d, %s offset:256' % (vt2, v(vH + 4, 4)),
        's_mov_b64 exec, -1')
    k.e('v_lshlrev_b32 v%d, 2, v0' % vt, 'v_add_u32 v%d, %d, v%d' % (vP + 8, SCR, vt),
        's_waitcnt lgkmcnt(0)', 's_barrier')
    k.e('ds_read_b32 v%d, v%d' % (vP, vP + 8), 'ds_read_b32 v%d, v%d offset:576' % (vP + 1, vP + 8),
        'ds_read_b32 v%d, v%d offset:1152' % (vP + 2, vP + 8), 'ds_read_b32 v%d, v%d offset:1728' % (vP + 3, vP + 8),
        'v_cmp_gt_u32 vcc, 144, v0', 's_waitcnt lgkmcnt(0)',
        'v_add_f32 v%d, v%d, v%d' % (vP, vP, vP + 1), 'v_add_f32 v%d, v%d, v%d' % (vP + 2, vP + 2, vP + 3),
        'v_mul_f32 v%d, %s, v%d' % (vP + 2, f32(1.0 / 1024), vP + 2),
        'v_mul_f32 v%d, %s, v%d' % (vP, f32(1.0 / 1024), vP),
        'v_fma_f32 v%d, -v%d, v%d, v%d' % (vP, vP + 2, vP + 2, vP), 'v_max_f32 v%d, 0, v%d' % (vP, vP),
        'v_add_f32 v%d, %s, v%d' % (vP, f32(1e-5), vP), 'v_rsq_f32 v%d, v%d' % (vP, vP),
        'v_sub_f32 v%d, 0, v%d' % (vP + 3, vP + 2),
        's_mov_b64 exec, vcc',
        'ds_write_b32 v%d, v%d offset:2304' % (vP + 8, vP + 3), 'ds_write_b32 v%d, v%d offset:%d' % (vP + 8, vP, 2304 + 576),
        's_mov_b64 exec, -1')
    k.e('s_cmp_lg_u32 s%d, 0' % sj, 's_cbranch_scc1 L_p1_nomx', 's_cmp_ge_u32 s%d, 2' % sw, 's_cbranch_scc1 L_p1_nomx',
        's_lshl_b32 s%d, s%d, 9' % (st2, si), 's_add_u32 s%d, s%d, %d' % (st2, st2, MX - SS),
        'buffer_store_dword v%d, v%d, s[%d:%d], s%d offen' % (vP + 2, vt, sD, sD + 3, st2))
    k.label('L_p1_nomx')
    k.e('s_lshr_b32 s%d, s2, 3' % st2, 's_lshl_b32 s%d, s%d, 6' % (st2, st2), 's_and_b32 s%d, s2, 3' % st3, 's_lshl_b32 s%d, s%d, 4' % (st3, st3),
        's_add_u32 s%d, s%d, s%d' % (st2, st2, st3), 's_and_b32 s%d, s2, 4' % st3, 's_lshl_b32 s%d, s%d, 1' % (st3, st3),
        's_add_u32 s%d, s%d, s%d' % (st2, st2, st3), 's_lshl_b32 s%d, s%d, 1' % (st3, sw), 's_add_u32 s%d, s%d, s%d' % (st2, st2, st3),
        's_add_u32 s%d, s%d, %d' % (st2, st2, RM - SS), 's_mov_b64 exec, 1',
        'buffer_store_short v%d, v%d, s[%d:%d], s%d offen' % (vrm + 1, vl, sD, sD + 3, st2),
        'buffer_store_short v%d, v%d, s[%d:%d], s%d offen offset:2048' % (vrm, vl, sD, sD + 3, st2),
        's_mov_b64 exec, -1')
    k.e('s_lshl_b32 s%d, s%d, 8' % (st2, smi),
        'v_lshlrev_b32 v%d, 2, v%d' % (vA + 1, vtt), 'v_add_u32 v%d, %d, v%d' % (vA + 1, L_NM, vA + 1), 'v_add_u32 v%d, s%d, v%d' % (vA, st2, vA + 1),
        'v_lshlrev_b32 v%d, 4, v%d' % (vA + 3, vg), 'v_add_u32 v%d, %d, v%d' % (vA + 3, L_NM, vA + 3), 'v_add_u32 v%d, s%d, v%d' % (vA + 2, st2, vA + 3),
        'v_xor_b32 v%d, 64, v%d' % (vB, vt2), 'v_xor_b32 v%d, 64, v%d' % (vB + 1, vt3))
    k.e('s_waitcnt lgkmcnt(0)', 's_barrier')
    vST = vG
    vCS = vG + 12
    vCV = vG + 28
    vSV = vP
    for f in range(4):
        k.e('ds_read2_b32 %s, v%d offset0:%d offset1:%d' % (v(vST + 2 * f, 2), vA, 16 * f, 16 * f + 144))
    k.e('ds_read_b32 v%d, v%d offset:512' % (vST + 8, vA + 1), 'ds_read_b32 v%d, v%d offset:%d' % (vST + 9, vA + 1, 512 + 576))
    for seg in range(2):
        k.e('ds_read_b128 %s, v%d offset:%d' % (v(vCS + seg * 8, 4), vt2, seg * 256),
            'ds_read_b128 %s, v%d offset:%d' % (v(vCS + seg * 8 + 4, 4), vB, seg * 256))
    k.e('ds_read_b32 v%d, v%d offset:512' % (vCV, vt3), 'ds_read_b32 v%d, v%d offset:512' % (vCV + 2, vB + 1))
    k.e('s_waitcnt lgkmcnt(0)')
    for f in range(4):
        k.e('ds_read_b128 %s, v%d offset:%d' % (v(vSV + f * 8, 4), vA + 2, f * 64),
            'ds_read_b128 %s, v%d offset:%d' % (v(vSV + f * 8 + 4, 4), vA + 2, f * 64 + 576))
    k.e('ds_read_b128 %s, v%d offset:512' % (v(vSV + 32, 4), vA + 3), 'ds_read_b128 %s, v%d offset:%d' % (v(vSV + 36, 4), vA + 3, 512 + 576))
    def fix_qk(t, cs, stp, dst):
        for h in (0, 2):
            k.e('v_pk_fma_f32 %s, %s, %s, %s op_sel_hi:[1,0,1]' % (v(t + h, 2), v(cs + h, 2), v(stp, 2), v(t + h, 2)))
        for h in (0, 2):
            k.e('v_pk_mul_f32 %s, %s, %s op_sel:[0,1]' % (v(t + h, 2), v(t + h, 2), v(stp, 2)))
        k.e('v_cvt_pk_bf16_f32 v%d, v%d, v%d' % (dst, t, t + 1), 'v_cvt_pk_bf16_f32 v%d, v%d, v%d' % (dst + 1, t + 2, t + 3))
    def fix_v(t, cv, sv, dst):
        for h in (0, 2):
            k.e('v_pk_fma_f32 %s, %s, %s, %s op_sel_hi:[1,0,1]' % (v(t + h, 2), v(sv + h, 2), v(cv, 2), v(t + h, 2)))
        for h in (0, 2):
            k.e('v_pk_mul_f32 %s, %s, %s' % (v(t + h, 2), v(t + h, 2), v(sv + 4 + h, 2)))
        k.e('v_cvt_pk_bf16_f32 v%d, v%d, v%d' % (dst, t, t + 1), 'v_cvt_pk_bf16_f32 v%d, v%d, v%d' % (dst + 1, t + 2, t + 3))
    vKP = vP + 40
    vE = vH
    fix_qk(vH + 4, vCS + 8, vST + 8, vE)
    k.e('s_waitcnt lgkmcnt(0)')
    fix_v(vH + 8, vCV, vSV + 32, vE + 2)
    k.e('s_lshl_b32 s%d, s%d, 10' % (st2, sw), 's_add_u32 s%d, s%d, %d' % (st2, st2, L_EX),
        'v_lshlrev_b32 v%d, 4, v%d' % (vt, vl), 'v_add_u32 v%d, s%d, v%d' % (vA, st2, vt),
        's_xor_b32 s%d, s%d, 2' % (st3, sw), 's_lshl_b32 s%d, s%d, 10' % (st3, st3), 's_add_u32 s%d, s%d, %d' % (st3, st3, L_EX),
        'v_add_u32 v%d, s%d, v%d' % (vA + 1, st3, vt),
        'ds_write_b128 v%d, %s' % (vA, v(vE, 4)))
    for f in range(4):
        for sl in range(2):
            fix_qk(vK + (sl * 4 + f) * 4, vCS + 8 + sl * 4, vST + 2 * f, vKP + (f + 1) * 4 + sl * 2)
    vQP = vK
    for f in range(4):
        for sl in range(2):
            fix_qk(vQ + (sl * 4 + f) * 4, vCS + sl * 4, vST + 2 * f, vQP + f * 4 + sl * 2)
    vVP = vQ
    for sl in range(2):
        for f in range(4):
            fix_v(vV + (sl * 4 + f) * 4, vCV + 2 * sl, vSV + f * 8, vVP + sl * 12 + (f + 1) * 2)
    k.e('s_waitcnt lgkmcnt(0)', 's_barrier', 'ds_read_b128 %s, v%d' % (v(vH + 4, 4), vA + 1))
    k.e('v_mov_b32 v%d, v%d' % (vKP, vE), 'v_mov_b32 v%d, v%d' % (vKP + 1, vE + 1),
        'v_mov_b32 v%d, v%d' % (vVP, vE + 2), 'v_mov_b32 v%d, v%d' % (vVP + 1, vE + 3))
    vMc, vMp, vM0 = vP, vP + 4, vP + 8
    vAc, vAp = vP + 12, vP + 14
    NINF = '0xff800000'
    k.e('v_lshlrev_b32 v%d, 2, v%d' % (vt2, vg), 'v_sub_u32 v%d, v%d, v%d' % (vt2, vtt, vt2),
        'v_mov_b32 v%d, %s' % (vt3, NINF),
        's_cmp_eq_u32 s%d, 0' % si, 's_cselect_b32 s%d, 64, 0' % st2)
    for r in range(4):
        k.e('v_subrev_u32 v%d, %d, v%d' % (vB, r, vt2),
            'v_cmp_gt_u32 vcc, 8, v%d' % vB, 'v_cndmask_b32 v%d, v%d, 0, vcc' % (vMc + r, vt3),
            'v_cmp_gt_i32 vcc, -8, v%d' % vB, 'v_cndmask_b32 v%d, v%d, 0, vcc' % (vMp + r, vt3),
            'v_cmp_le_i32 vcc, 0, v%d' % vB)
        half = '0xffff' if r % 2 == 0 else '0xffff0000'
        k.e('v_mov_b32 v%d, %s' % (vB + 1, half), 'v_cndmask_b32 v%d, 0, v%d, vcc' % (vB + 2 + r, vB + 1))
        k.e('v_lshl_add_u32 v%d, v%d, 1, %d' % (vB, vg, r >> 1), 'v_sub_u32 v%d, v%d, v%d' % (vB, vB, vtt),
            's_cmp_eq_u32 s%d, %d' % (smi, r & 1), 's_cselect_b32 s%d, s%d, 64' % (st3, st2),
            'v_cmp_lt_i32 vcc, s%d, v%d' % (st3, vB), 'v_cndmask_b32 v%d, v%d, 0, vcc' % (vM0 + r, vt3))
    k.e('v_or_b32 v%d, v%d, v%d' % (vAc, vB + 2, vB + 3), 'v_or_b32 v%d, v%d, v%d' % (vAc + 1, vB + 4, vB + 5),
        'v_not_b32 v%d, v%d' % (vAp, vAc), 'v_not_b32 v%d, v%d' % (vAp + 1, vAc + 1))
    k.e('s_waitcnt lgkmcnt(0)',
        'v_mov_b32 v%d, v%d' % (vKP + 2, vH + 4), 'v_mov_b32 v%d, v%d' % (vKP + 3, vH + 5),
        'v_mov_b32 v%d, v%d' % (vVP + 12, vH + 6), 'v_mov_b32 v%d, v%d' % (vVP + 13, vH + 7))
    vSc, vSp = vV, vV + 16
    for f in (1, 2, 3, 0):
        k.e('%s %s, %s, %s, %s' % (MF, v(vSc + f * 4, 4), v(vKP + (f + 1) * 4, 4), v(vQP + f * 4, 4), v(vMc, 4)),
            '%s %s, %s, %s, %s' % (MF, v(vSp + f * 4, 4), v(vKP + f * 4, 4), v(vQP + f * 4, 4), v(vMp if f else vM0, 4)))
    k.e('s_mov_b32 s%d, %s' % (sc, f32(LOG2E * 32 ** -0.5)))
    vmx = vP + 16; vmt = vP + 20; vPB = vP + 24
    for f in (1, 2, 3, 0):
        for r in range(4): k.e('v_max_f32 v%d, v%d, v%d' % (vSc + f * 4 + r, vSc + f * 4 + r, vSp + f * 4 + r))
        b = vSc + f * 4
        k.e('v_max3_f32 v%d, v%d, v%d, v%d' % (vmx + f, b, b + 1, b + 2), 'v_max_f32 v%d, v%d, v%d' % (vmx + f, vmx + f, b + 3))
    xlane_reduce(k, 'v_max_f32', [vmx + f for f in range(4)], [vmt + f for f in range(4)])
    for f in range(4): k.e('v_mul_f32 v%d, s%d, v%d' % (vmx + f, sc, vmx + f))
    for f in range(4):
        b = vSc + f * 4
        for r in range(4): k.e('v_fma_f32 v%d, v%d, s%d, -v%d' % (b + r, b + r, sc, vmx + f))
        for r in range(4): k.e('v_exp_f32 v%d, v%d' % (b + r, b + r))
        k.e('v_cvt_pk_bf16_f32 v%d, v%d, v%d' % (b, b, b + 1), 'v_cvt_pk_bf16_f32 v%d, v%d, v%d' % (b + 1, b + 2, b + 3))
        p = vPB + f * 4
        k.e('v_and_b32 v%d, v%d, v%d' % (p, b, vAp), 'v_and_b32 v%d, v%d, v%d' % (p + 1, b + 1, vAp + 1),
            'v_and_b32 v%d, v%d, v%d' % (p + 2, b, vAc), 'v_and_b32 v%d, v%d, v%d' % (p + 3, b + 1, vAc + 1))
    vOa, vOb, vL = vV, vV + 16, vG
    for f in range(4):
        p = v(vPB + f * 4, 4)
        k.e('%s %s, %s, %s, 0' % (MF, v(vL + f * 4, 4), v(vone, 4), p),
            '%s %s, %s, %s, 0' % (MF, v(vOa + f * 4, 4), v(vVP + 2 * f, 4), p),
            '%s %s, %s, %s, 0' % (MF, v(vOb + f * 4, 4), v(vVP + 12 + 2 * f, 4), p))
    k.e('s_lshl_b32 s%d, s%d, 1' % (st2, sj), 's_add_u32 s%d, s%d, s%d' % (st2, st2, shd), 's_lshl_b32 s%d, s%d, 17' % (st2, st2),
        's_lshl_b32 s%d, s%d, 1' % (st3, si), 's_add_u32 s%d, s%d, s%d' % (st3, st3, smi), 's_lshl_b32 s%d, s%d, 12' % (st3, st3),
        's_add_u32 s%d, s%d, s%d' % (st2, st2, st3))
    vOut = vK + 16
    for f in range(4):
        k.e('v_rcp_f32 v%d, v%d' % (vL + f * 4, vL + f * 4))
    for f in range(4):
        for t_ in (vOa, vOb):
            for h in (0, 2):
                k.e('v_pk_mul_f32 %s, %s, %s op_sel_hi:[1,0]' % (v(t_ + f * 4 + h, 2), v(t_ + f * 4 + h, 2), v(vL + f * 4, 2)))
        for i, t_ in enumerate((vOa, vOb)):
            b = t_ + f * 4
            k.e('v_cvt_pk_bf16_f32 v%d, v%d, v%d' % (vOut + f * 4 + 2 * i, b, b + 1),
                'v_cvt_pk_bf16_f32 v%d, v%d, v%d' % (vOut + f * 4 + 2 * i + 1, b + 2, b + 3))
    k.e('s_cmp_eq_u32 s%d, 0' % smi, 's_cbranch_scc1 L_p1_noswap')
    for f in range(4):
        k.e('v_swap_b32 v%d, v%d' % (vOut + f * 4, vOut + f * 4 + 2), 'v_swap_b32 v%d, v%d' % (vOut + f * 4 + 1, vOut + f * 4 + 3))
    k.label('L_p1_noswap')
    for f in range(4):
        k.e('buffer_store_dwordx4 %s, v%d, s[%d:%d], s%d offen offset:%d' % (v(vOut + f * 4, 4), vt, sO, sO + 3, st2, f * 1024))
    k.label(END)
    k.e('s_endpgm')
    return k, lds_bytes
```

```python
import sys, math
from asmlib import *

NAME = 'sequential_preLN__sliding_local_dilated__glu_gated_glu__prompt'
FO, FH, FR, FG = 0x0, 0x400000, 0x800000, 0xC00000
SS, MX, RM = 0x1A00000, 0x1A20000, 0x1A24000
KSTR = 131072
MF = 'v_mfma_f32_16x16x32_bf16'
LOG2E = 1.4426950408889634
import struct
def f32(x): return '0x%08x' % struct.unpack('<I', struct.pack('<f', x))[0]

CFG = dict(p4_U=7, p4_LA=5, p2_LA=5, p3_U=4, p3_LA=3, p3_PD=4, sm_PD=6)

def srd(k, d, base, off, size):
    if off:
        k.e('s_add_u32 s%d, s%d, 0x%x' % (d, base, off), 's_addc_u32 s%d, s%d, 0' % (d + 1, base + 1))
    else:
        k.e('s_mov_b32 s%d, s%d' % (d, base), 's_mov_b32 s%d, s%d' % (d + 1, base + 1))
    k.e('s_mov_b32 s%d, 0x%x' % (d + 2, size), 's_mov_b32 s%d, 0x00020000' % (d + 3))

def xlane_reduce(k, op, regs, tmp):
    for sw in ('v_permlane32_swap_b32', 'v_permlane16_swap_b32'):
        for r, t in zip(regs, tmp): k.e('v_mov_b32 v%d, v%d' % (t, r))
        for r, t in zip(regs, tmp): k.e('%s v%d, v%d' % (sw, r, t))
        for r, t in zip(regs, tmp): k.e('%s v%d, v%d, v%d' % (op, r, r, t))

def gemm_d(k, NM, NN, KS, NIT, U, LA, RW, PD, acc, xreg, wreg, wreads, group_ops, L, vm_every, lab, s_cnt):
    static = (U == NIT)
    per = KS * NN
    total = U * per
    assert total % RW == 0 and PD <= RW - 1 and LA <= U - 1
    def frag(z):
        z %= total
        return z // per, (z % per) // NN, z % NN
    def nreads(z):
        u, ks, n = frag(z)
        return len(wreads(u, ks, n, 0))
    nb = L if static else min(L, (PD * NM) // vm_every)
    for g in range(LA):
        ops = group_ops(g % U)
        for op in (ops if g < LA - 1 else ops[:nb]): k.e(*op)
    issued = (LA - 1) * L + nb
    def pre():
        k.e('s_waitcnt vmcnt(%d)' % min(63, issued - L), 's_barrier')
        for z in range(PD):
            u, ks, n = frag(z)
            k.e(*wreads(u, ks, n, z % RW))
        if not static:
            k.e('s_mov_b32 s%d, %d' % (s_cnt, NIT // U))
            k.label(lab)
        pending = list(group_ops((LA - 1) % U))[nb:]
        cnt = PD * NM
        for z in range(total):
            u, ks, n = frag(z)
            last_static = static and z + PD >= total
            w = sum(nreads(zz) for zz in range(z + 1, z + PD) if not (static and zz >= total))
            k.e('s_waitcnt lgkmcnt(%d)' % min(15, w))
            rd = [] if last_static else list(wreads(*frag(z + PD), (z + PD) % RW))
            bar = ((z + PD) % per == 0) and not last_static
            for m in range(NM):
                k.e('%s %s, %s, %s, %s' % (MF, acc(n, m), wreg(z % RW), xreg(u, ks, m), acc(n, m)))
                if m == 0 and bar:
                    assert not pending, 'group issue did not finish before the next barrier'
                    it = u
                    if static:
                        after = max(0, min(it + LA - 1, NIT - 1) - (it + 1))
                    else:
                        after = LA - 2
                    k.e('s_waitcnt vmcnt(%d)' % min(63, after * L), 's_barrier')
                    if not (static and it + LA >= NIT):
                        pending = list(group_ops((it + LA) % U))
                    cnt = 0
                if rd:
                    k.e(rd.pop(0))
                    if m == NM - 1:
                        for r in rd: k.e(r)
                        rd = []
                cnt += 1
                if pending and cnt % vm_every == 0:
                    k.e(*pending.pop(0))
        if not static:
            assert len(pending) == L - nb, (len(pending), L, nb)
            k.e('s_sub_u32 s%d, s%d, 1' % (s_cnt, s_cnt), 's_cmp_lg_u32 s%d, 0' % s_cnt, 's_cbranch_scc1 %s' % lab)
    return pre, issued

def head(k, end):
    k.e('s_cmp_ge_u32 s2, 256', 's_cbranch_scc1 %s' % end)

def gen_small(mode):
    p2 = mode == 'p2'
    k = Kernel('%s_kernel' % mode)
    END = 'L_%s_end' % mode
    K = 1024 if p2 else 3584
    NIT = K // 128
    U = 8 if p2 else CFG['p4_U']
    LA = CFG['p2_LA'] if p2 else CFG['p4_LA']
    NN = 5 if p2 else 4
    RW, PD = 8, CFG['sm_PD']
    lds_bytes = U * 16384 + (4096 if p2 else 0)
    head(k, END)
    k.e('s_load_dwordx2 s[4:5], s[0:1], %d' % (16 if p2 else 48),
        's_load_dwordx2 s[6:7], s[0:1], 72',
        's_load_dwordx2 s[8:9], s[0:1], %d' % (0 if p2 else 56))
    V = Alloc('v', 0)
    vl = V.get(); vt = V.get(); vt2 = V.get(); vt3 = V.get()
    vX = V.get(4); vD = V.get(4); vW = V.get(4); vW2 = V.get(4); vR = V.get(); vO = V.get(); vRow = V.get()
    vres = V.get(16, 4); vmx = V.get(2)
    vacc = V.get(40, 4); vwin = V.get(RW * 4, 4); vtmp = V.get(32, 4)
    sw, si, sj, st, st2 = 10, 11, 12, 13, 14
    sW, sX, sA, sB, sC, sD = 16, 20, 24, 28, 32, 36
    skx, skw, sm0, scnt, sk128, s64k = 40, 41, 42, 43, 44, 45
    k.e('v_lshrrev_b32 v%d, 6, v0' % vt, 'v_and_b32 v%d, 63, v0' % vl,
        'v_readfirstlane_b32 s%d, v%d' % (sw, vt))
    k.e('s_and_b32 s%d, s2, 3' % si, 's_lshl_b32 s%d, s%d, 2' % (si, si),
        's_lshr_b32 s%d, s2, 3' % st, 's_and_b32 s%d, s%d, 3' % (st2, st), 's_add_u32 s%d, s%d, s%d' % (si, si, st2),
        's_lshr_b32 s%d, s%d, 2' % (sj, st), 's_and_b32 s%d, s2, 4' % st2, 's_lshl_b32 s%d, s%d, 1' % (st2, st2),
        's_add_u32 s%d, s%d, s%d' % (sj, sj, st2))
    k.e('s_lshl_b32 s%d, s%d, 2' % (st, si), 's_add_u32 s%d, s%d, s%d' % (st, st, sw), 's_lshl_b32 s%d, s%d, 11' % (st, st),
        'v_lshlrev_b32 v%d, 4, v%d' % (vt, vl), 'v_add_u32 v%d, s%d, v%d' % (vX, st, vt))
    for q in range(1, 4): k.e('v_add_u32 v%d, 0x%x, v%d' % (vX + q, q * KSTR, vX))
    k.e('s_lshl_b32 s%d, s%d, 18' % (st, sj), 'v_add_u32 v%d, s%d, v%d' % (vO, st, vX))
    k.e('v_lshrrev_b32 v%d, 3, v%d' % (vt, vl), 'v_lshlrev_b32 v%d, 11, v%d' % (vD, vt),
        'v_lshrrev_b32 v%d, 4, v%d' % (vt, vl), 'v_lshlrev_b32 v%d, 1, v%d' % (vt, vt),
        'v_and_b32 v%d, 7, v%d' % (vt2, vl), 'v_xor_b32 v%d, v%d, v%d' % (vt, vt, vt2),
        'v_lshl_add_u32 v%d, v%d, 4, v%d' % (vD, vt, vD),
        's_lshl_b32 s%d, s%d, 16' % (st, sw), 's_lshl_b32 s%d, s%d, 7' % (st2, sj), 's_add_u32 s%d, s%d, s%d' % (st, st, st2),
        'v_add_u32 v%d, s%d, v%d' % (vD, st, vD))
    for q in range(1, 4): k.e('v_add_u32 v%d, 0x%x, v%d' % (vD + q, q * 16384, vD))
    k.e('s_lshl_b32 s%d, s%d, 7' % (st, si), 's_and_b32 s%d, s%d, 1' % (st2, sw), 's_lshl_b32 s%d, s%d, 6' % (st2, st2),
        's_add_u32 s%d, s%d, s%d' % (st, st, st2), 's_lshr_b32 s%d, s%d, 1' % (st2, sw), 's_add_u32 s%d, s%d, s%d' % (st, st, st2),
        's_lshl_b32 s%d, s%d, 11' % (st, st), 's_lshl_b32 s%d, s%d, 7' % (st2, sj), 's_add_u32 s%d, s%d, s%d' % (st, st, st2),
        'v_and_b32 v%d, 15, v%d' % (vt, vl), 'v_lshlrev_b32 v%d, 12, v%d' % (vRow, vt),
        'v_lshrrev_b32 v%d, 4, v%d' % (vt2, vl), 'v_lshl_add_u32 v%d, v%d, 3, v%d' % (vRow, vt2, vRow),
        'v_add_u32 v%d, s%d, v%d' % (vRow, st, vRow))
    k.e('s_mov_b32 s%d, 0' % skx, 's_mov_b32 s%d, 0' % skw, 's_lshl_b32 s%d, s%d, 12' % (sm0, sw),
        's_mov_b32 s%d, 0x%x' % (sk128, KSTR), 's_mov_b32 s%d, 0x10000' % s64k)
    k.e('s_waitcnt lgkmcnt(0)')
    srd(k, sW, 4, 0, K * 2048)
    srd(k, sX, 6, FO if p2 else FG, (K // 32) * KSTR)
    srd(k, sA, 8, 0, 2048 * 2048)
    srd(k, sB, 6, FR, 32 * KSTR)
    if p2:
        srd(k, sC, 6, FH, 32 * KSTR)
        srd(k, sD, 6, SS, RM + 4096 - SS)
        k.e('v_lshlrev_b32 v%d, 4, v%d' % (vt, vl), 's_lshl_b32 s%d, s%d, 10' % (st, sw),
            's_add_u32 m0, s%d, 0x%x' % (st, U * 16384), 's_add_u32 s%d, s%d, 0x%x' % (st, st, RM - SS),
            'buffer_load_dwordx4 v%d, s[%d:%d], s%d offen lds' % (vt, sD, sD + 3, st))
        for m in range(2):
            for n in range(4):
                k.e('buffer_load_dwordx2 %s, v%d, s[%d:%d], %s offen offset:%d' %
                    (v(vres + (m * 4 + n) * 2, 2), vRow, sA, sA + 3, 's%d' % s64k if m else '0', n * 32))
        k.e('v_and_b32 v%d, 15, v%d' % (vt2, vl), 'v_lshlrev_b32 v%d, 2, v%d' % (vt2, vt2),
            's_lshl_b32 s%d, s%d, 2' % (st, si), 's_add_u32 s%d, s%d, s%d' % (st, st, sw), 's_lshl_b32 s%d, s%d, 7' % (st, st),
            's_add_u32 s%d, s%d, 0x%x' % (st, st, MX - SS))
        for m in range(2):
            k.e('buffer_load_dword v%d, v%d, s[%d:%d], s%d offen offset:%d' % (vmx + m, vt2, sD, sD + 3, st, m * 64))
    else:
        for m in range(2):
            for h in range(2):
                k.e('buffer_load_dwordx4 %s, v%d, s[%d:%d], %s offen offset:%d' %
                    (v(vres + (m * 2 + h) * 4, 4), vO, sB, sB + 3, 's%d' % sk128 if h else '0', m * 1024))

    def group_ops(u):
        ops = []
        for q in range(4):
            ops.append(['s_add_u32 m0, s%d, 0x%x' % (sm0, u * 16384 + q * 1024),
                        'buffer_load_dwordx4 v%d, s[%d:%d], s%d offen lds' % (vD + q, sW, sW + 3, skw)])
            for m in range(2):
                ops.append(['buffer_load_dwordx4 %s, v%d, s[%d:%d], s%d offen offset:%d' %
                            (a((u * 8 + q * 2 + m) * 4, 4), vX + q, sX, sX + 3, skx, m * 1024)])
        ops[-1] += ['s_add_u32 s%d, s%d, 0x%x' % (skx, skx, 4 * KSTR), 's_add_u32 s%d, s%d, 0x%x' % (skw, skw, 128 * 2048)]
        return ops
    def wreads(u, ks, n, buf):
        d = vwin + buf * 4
        if n == 4:
            return ['ds_read_b128 %s, v%d offset:%d' % (v(d, 4), vR, (u * 4 + ks) * 64)]
        base = (vW if u < 4 else vW2) + n
        off = (u & 3) * 16384 + ks * 4096
        return ['ds_read_b64_tr_b16 %s, v%d offset:%d' % (v(d, 2), base, off),
                'ds_read_b64_tr_b16 %s, v%d offset:%d' % (v(d + 2, 2), base, off + 2048)]
    run, issued = gemm_d(k, 2, NN, 4, NIT, U, LA, RW, PD,
                 lambda n, m: v(vacc + (n * 2 + m) * 4, 4),
                 lambda u, ks, m: a((u * 8 + ks * 2 + m) * 4, 4),
                 lambda b: v(vwin + b * 4, 4), wreads, group_ops, 12, 1, 'L_%s_loop' % mode, scnt)
    k.e('v_lshrrev_b32 v%d, 4, v%d' % (vt, vl),
        'v_and_b32 v%d, 15, v%d' % (vt2, vl),
        'v_lshrrev_b32 v%d, 2, v%d' % (vt3, vt2), 'v_lshl_add_u32 v%d, v%d, 2, v%d' % (vt3, vt, vt3),
        'v_lshlrev_b32 v%d, 7, v%d' % (vW, vt3),
        'v_and_b32 v%d, 3, v%d' % (vt2, vt2), 'v_lshl_add_u32 v%d, v%d, 3, v%d' % (vW, vt2, vW),
        'v_lshrrev_b32 v%d, 1, v%d' % (vt3, vt3), 'v_and_b32 v%d, 3, v%d' % (vt3, vt3))
    for f in (3, 2, 1, 0):
        k.e('v_xor_b32 v%d, %d, v%d' % (vt2, f, vt3), 'v_lshl_add_u32 v%d, v%d, 5, v%d' % (vW + f, vt2, vW))
    for f in range(4): k.e('v_add_u32 v%d, 0x10000, v%d' % (vW2 + f, vW + f))
    if p2:
        k.e('v_and_b32 v%d, 1, v%d' % (vt2, vl), 'v_lshlrev_b32 v%d, 11, v%d' % (vR, vt2),
            'v_lshl_add_u32 v%d, v%d, 4, v%d' % (vR, vt, vR), 'v_add_u32 v%d, 0x%x, v%d' % (vR, U * 16384, vR))
    for r in range(NN * 8): k.e('v_mov_b32 v%d, 0' % (vacc + r))
    run()
    A = lambda n, m, r: vacc + (n * 2 + m) * 4 + r
    if p2:
        vmu = vtmp; vss = vtmp + 2; vsw = vtmp + 4; vx = vtmp + 6; vpk = vtmp + 8
        for m in range(2):
            k.e('v_add_f32 v%d, v%d, v%d' % (vmu + m, A(4, m, 0), A(4, m, 1)),
                'v_add_f32 v%d, v%d, v%d' % (vmu + m, vmu + m, vmx + m), 'v_mov_b32 v%d, 0' % (vss + m))
        for m in range(2):
            for n in range(4):
                for h in range(2):
                    src = vres + (m * 4 + n) * 2 + h
                    k.e('v_lshlrev_b32 v%d, 16, v%d' % (vx, src), 'v_and_b32 v%d, 0xffff0000, v%d' % (vx + 1, src))
                    r0, r1 = A(n, m, 2 * h), A(n, m, 2 * h + 1)
                    k.e('v_add_f32 v%d, v%d, v%d' % (r0, r0, vx), 'v_add_f32 v%d, v%d, v%d' % (r1, r1, vx + 1),
                        'v_cvt_pk_bf16_f32 v%d, v%d, v%d' % (vpk + n * 2 + h, r0, r1),
                        'v_sub_f32 v%d, v%d, v%d' % (r0, r0, vmu + m), 'v_sub_f32 v%d, v%d, v%d' % (r1, r1, vmu + m),
                        'v_cvt_pk_bf16_f32 v%d, v%d, v%d' % (vpk + 8 + n * 2 + h, r0, r1),
                        'v_fmac_f32 v%d, v%d, v%d' % (vss + m, r0, r0), 'v_fmac_f32 v%d, v%d, v%d' % (vss + m, r1, r1))
            for h in range(2):
                so = 's%d' % sk128 if h else '0'
                k.e('buffer_store_dwordx4 %s, v%d, s[%d:%d], %s offen offset:%d' % (v(vpk + h * 4, 4), vO, sB, sB + 3, so, m * 1024),
                    'buffer_store_dwordx4 %s, v%d, s[%d:%d], %s offen offset:%d' % (v(vpk + 8 + h * 4, 4), vO, sC, sC + 3, so, m * 1024))
        xlane_reduce(k, 'v_add_f32', [vss, vss + 1], [vsw, vsw + 1])
        k.e('s_lshl_b32 s%d, s%d, 2' % (st, si), 's_add_u32 s%d, s%d, s%d' % (st, st, sw), 's_lshl_b32 s%d, s%d, 11' % (st, st),
            's_lshr_b32 s%d, s%d, 2' % (st2, sj), 's_lshl_b32 s%d, s%d, 8' % (st2, st2), 's_add_u32 s%d, s%d, s%d' % (st, st, st2),
            's_and_b32 s%d, s%d, 3' % (st2, sj), 's_lshl_b32 s%d, s%d, 2' % (st2, st2), 's_add_u32 s%d, s%d, s%d' % (st, st, st2),
            'v_lshlrev_b32 v%d, 4, v%d' % (vt, vl), 's_mov_b64 exec, 0xffff')
        for m in range(2):
            k.e('buffer_store_dword v%d, v%d, s[%d:%d], s%d offen offset:%d' % (vss + m, vt, sD, sD + 3, st, m * 1024))
    else:
        vx = vtmp; vpk = vtmp + 2
        for m in range(2):
            for n in range(4):
                for h in range(2):
                    src = vres + m * 8 + n * 2 + h
                    k.e('v_lshlrev_b32 v%d, 16, v%d' % (vx, src), 'v_and_b32 v%d, 0xffff0000, v%d' % (vx + 1, src))
                    r0, r1 = A(n, m, 2 * h), A(n, m, 2 * h + 1)
                    k.e('v_add_f32 v%d, v%d, v%d' % (r0, r0, vx), 'v_add_f32 v%d, v%d, v%d' % (r1, r1, vx + 1),
                        'v_cvt_pk_bf16_f32 v%d, v%d, v%d' % (vpk + (m * 4 + n) * 2 + h, r0, r1))
                k.e('buffer_store_dwordx2 %s, v%d, s[%d:%d], %s offen offset:%d' %
                    (v(vpk + (m * 4 + n) * 2, 2), vRow, sA, sA + 3, 's%d' % s64k if m else '0', n * 32))
    k.label(END)
    k.e('s_endpgm')
    return k, lds_bytes

def gen_p3():
    k = Kernel('p3_kernel')
    END = 'L_p3_end'
    U, LA, PD, RW = CFG['p3_U'], CFG['p3_LA'], CFG['p3_PD'], 7
    STG = 28672
    lds_bytes = U * STG
    head(k, END)
    k.e('s_load_dwordx4 s[4:7], s[0:1], 32', 's_load_dwordx2 s[8:9], s[0:1], 72')
    V = Alloc('v', 0)
    vl = V.get(); vt = V.get(); vt2 = V.get(); vt3 = V.get()
    vX = V.get(2); vD = V.get(7); vW = V.get(2); vO = V.get()
    vsc = V.get(8, 2)
    vacc = V.get(224, 4); vtmp = V.get(8, 4)
    awin = U * 32
    sw, sI, sJ, st, st2, st3 = 10, 11, 12, 13, 14, 15
    sW, sX, sG, sS = 16, 20, 24, 28
    skx, skw, sm0, scnt, so1, so2, so3 = 32, 33, 34, 35, 36, 37, 38
    k.e('v_lshrrev_b32 v%d, 6, v0' % vt, 'v_and_b32 v%d, 63, v0' % vl, 'v_readfirstlane_b32 s%d, v%d' % (sw, vt))
    k.e('s_and_b32 s%d, s2, 1' % sI, 's_lshl_b32 s%d, s%d, 2' % (sI, sI), 's_lshr_b32 s%d, s2, 3' % st,
        's_and_b32 s%d, s%d, 3' % (st2, st), 's_add_u32 s%d, s%d, s%d' % (sI, sI, st2),
        's_lshr_b32 s%d, s%d, 2' % (sJ, st), 's_and_b32 s%d, s2, 6' % st2, 's_lshl_b32 s%d, s%d, 2' % (st2, st2),
        's_add_u32 s%d, s%d, s%d' % (sJ, sJ, st2))
    k.e('s_lshl_b32 s%d, s%d, 2' % (st, sI), 's_add_u32 s%d, s%d, s%d' % (st, st, sw), 's_lshl_b32 s%d, s%d, 12' % (st, st),
        'v_lshlrev_b32 v%d, 4, v%d' % (vt, vl), 'v_add_u32 v%d, s%d, v%d' % (vX, st, vt),
        'v_add_u32 v%d, 0x%x, v%d' % (vX + 1, KSTR, vX))
    k.e('s_and_b32 s%d, s%d, 1' % (st, sJ), 's_lshl_b32 s%d, s%d, 1' % (st, st),
        's_and_b32 s%d, s%d, 1' % (st2, sw), 's_mul_i32 s%d, s%d, %d' % (st2, st2, 32 * 7168),
        's_mul_i32 s%d, s%d, 224' % (st3, sJ), 's_add_u32 s%d, s%d, s%d' % (st2, st2, st3))
    for q in range(7):
        k.e('v_add_u32 v%d, %d, v%d' % (vt, 64 * q, vl), 'v_mul_u32_u24 v%d, 4682, v%d' % (vt2, vt),
            'v_lshrrev_b32 v%d, 16, v%d' % (vt2, vt2), 'v_mul_u32_u24 v%d, 14, v%d' % (vt3, vt2),
            'v_sub_u32 v%d, v%d, v%d' % (vt, vt, vt3), 'v_add_u32 v%d, s%d, v%d' % (vt, st, vt),
            'v_subrev_u32 v%d, 14, v%d' % (vt3, vt), 'v_min_u32 v%d, v%d, v%d' % (vt, vt, vt3),
            'v_mul_u32_u24 v%d, 7168, v%d' % (vt2, vt2), 'v_lshl_add_u32 v%d, v%d, 4, v%d' % (vt2, vt, vt2),
            'v_add_u32 v%d, s%d, v%d' % (vD + q, st2, vt2))
    k.e('s_mov_b32 s%d, 0' % skx, 's_mov_b32 s%d, 0' % skw, 's_mul_i32 s%d, s%d, 7168' % (sm0, sw))
    k.e('s_waitcnt lgkmcnt(0)')
    k.e('s_cmp_lt_u32 s%d, 2' % sw, 's_cselect_b32 s%d, s4, s6' % sW, 's_cselect_b32 s%d, s5, s7' % (sW + 1),
        's_mov_b32 s%d, 0x%x' % (sW + 2, 1024 * 7168), 's_mov_b32 s%d, 0x00020000' % (sW + 3))
    srd(k, sX, 8, FH, 32 * KSTR)
    srd(k, sG, 8, FG, 112 * KSTR)
    srd(k, sS, 8, SS, 128 * 1024)
    for m in range(4):
        k.e('buffer_load_dwordx4 %s, v%d, s[%d:%d], 0 offen offset:%d' % (v(vacc + m * 4, 4), vX, sS, sS + 3, m * 1024))

    def group_ops(u):
        ops = []
        xs = [['buffer_load_dwordx4 %s, v%d, s[%d:%d], s%d offen offset:%d' %
               (a((u * 8 + ks * 4 + m) * 4, 4), vX + ks, sX, sX + 3, skx, m * 1024)] for ks in range(2) for m in range(4)]
        for q in range(7):
            ops.append(['s_add_u32 m0, s%d, 0x%x' % (sm0, u * STG + q * 1024),
                        'buffer_load_dwordx4 v%d, s[%d:%d], s%d offen lds' % (vD + q, sW, sW + 3, skw)])
            ops.append(xs[q])
        ops.append(xs[7] + ['s_add_u32 s%d, s%d, 0x%x' % (skx, skx, 2 * KSTR), 's_add_u32 s%d, s%d, 0x%x' % (skw, skw, 64 * 7168)])
        return ops
    def wreads(u, ks, n, buf):
        d = awin + buf * 4
        off = (u & 1) * STG + (n & 1) * 14336 + ks * 7168 + (n >> 1) * 32
        return ['ds_read_b64_tr_b16 %s, v%d offset:%d' % (a(d, 2), vW + (u >> 1), off),
                'ds_read_b64_tr_b16 %s, v%d offset:%d' % (a(d + 2, 2), vW + (u >> 1), off + 3584)]
    run, issued = gemm_d(k, 4, 14, 2, 16, U, LA, RW, PD,
                 lambda n, m: v(vacc + (n * 4 + m) * 4, 4),
                 lambda u, ks, m: a((u * 8 + ks * 4 + m) * 4, 4),
                 lambda b: a(awin + b * 4, 4), wreads, group_ops, 15, CFG.get('p3_vm', 4), 'L_p3_loop', scnt)
    k.e('v_lshrrev_b32 v%d, 4, v%d' % (vt, vl), 'v_and_b32 v%d, 15, v%d' % (vt2, vl),
        'v_lshrrev_b32 v%d, 2, v%d' % (vt3, vt2), 'v_lshl_add_u32 v%d, v%d, 2, v%d' % (vt3, vt, vt3),
        'v_mul_u32_u24 v%d, 224, v%d' % (vW, vt3), 'v_and_b32 v%d, 3, v%d' % (vt2, vt2),
        'v_lshl_add_u32 v%d, v%d, 3, v%d' % (vW, vt2, vW), 'v_add_u32 v%d, 0x%x, v%d' % (vW + 1, 2 * STG, vW))
    k.e('s_mul_i32 s%d, s%d, 7' % (st, sJ), 's_add_u32 s%d, s%d, 1' % (st, st), 's_lshr_b32 s%d, s%d, 1' % (st, st),
        's_lshl_b32 s%d, s%d, 17' % (st, st), 's_add_u32 s%d, s%d, 0x%x' % (so1, st, KSTR), 's_add_u32 s%d, s%d, 0x%x' % (so2, st, 2 * KSTR),
        's_add_u32 s%d, s%d, 0x%x' % (st2, st, 3 * KSTR), 's_sub_u32 s%d, s%d, 0x%x' % (st3, st, KSTR - 8),
        's_bitcmp1_b32 s%d, 0' % sJ, 's_cselect_b32 s%d, s%d, s%d' % (so3, st3, st2), 's_mov_b32 s%d, s%d' % (sI, st))
    so0 = sI
    for r in range(16, 224): k.e('v_mov_b32 v%d, 0' % (vacc + r))
    k.e('s_waitcnt vmcnt(%d)' % min(63, issued))
    for m in range(4):
        b = vacc + m * 4
        k.e('v_add_f32 v%d, v%d, v%d' % (b, b, b + 1), 'v_add_f32 v%d, v%d, v%d' % (b + 2, b + 2, b + 3),
            'v_add_f32 v%d, v%d, v%d' % (b, b, b + 2))
    xlane_reduce(k, 'v_add_f32', [vacc + m * 4 for m in range(4)], [vacc + m * 4 + 1 for m in range(4)])
    for m in range(4):
        b = vacc + m * 4
        k.e('v_mov_b32 v%d, %s' % (b + 1, f32(1e-5)), 'v_fmac_f32 v%d, %s, v%d' % (b + 1, f32(1.0 / 1024), b),
            'v_sqrt_f32 v%d, v%d' % (vsc + 2 * m + 1, b + 1), 'v_rsq_f32 v%d, v%d' % (vsc + 2 * m, b + 1),
            'v_mul_f32 v%d, %s, v%d' % (vsc + 2 * m, f32(-LOG2E), vsc + 2 * m))
    for r in range(16): k.e('v_mov_b32 v%d, 0' % (vacc + r))
    run()
    A = lambda n, m: vacc + (n * 4 + m) * 4
    def glu(sl, m):
        G, Uu = A(2 * sl, m), A(2 * sl + 1, m)
        sc = v(vsc + 2 * m, 2)
        for h in (0, 2):
            k.e('v_pk_mul_f32 %s, %s, %s op_sel_hi:[1,0]' % (v(G + h, 2), v(G + h, 2), sc))
        for r in range(4): k.e('v_exp_f32 v%d, v%d' % (G + r, G + r))
        for h in (0, 2):
            k.e('v_pk_fma_f32 %s, %s, %s, %s op_sel:[0,1,1] op_sel_hi:[1,1,1]' % (v(G + h, 2), v(G + h, 2), sc, sc))
        for r in range(4): k.e('v_rcp_f32 v%d, v%d' % (G + r, G + r))
        for h in (0, 2):
            k.e('v_pk_mul_f32 %s, %s, %s' % (v(Uu + h, 2), v(Uu + h, 2), v(G + h, 2)))
    for pr in range(3):
        for m in range(4):
            glu(2 * pr, m); glu(2 * pr + 1, m)
            d = A(4 * pr, m)
            for i, sl in enumerate((2 * pr, 2 * pr + 1)):
                Uu = A(2 * sl + 1, m)
                k.e('v_cvt_pk_bf16_f32 v%d, v%d, v%d' % (d + 2 * i, Uu, Uu + 1), 'v_cvt_pk_bf16_f32 v%d, v%d, v%d' % (d + 2 * i + 1, Uu + 2, Uu + 3))
            k.e('buffer_store_dwordx4 %s, v%d, s[%d:%d], s%d offen offset:%d' % (v(d, 4), vX, sG, sG + 3, (so0, so1, so2)[pr], m * 1024))
    for m in range(4):
        glu(6, m)
        d, Uu = A(12, m), A(13, m)
        k.e('v_cvt_pk_bf16_f32 v%d, v%d, v%d' % (d, Uu, Uu + 1), 'v_cvt_pk_bf16_f32 v%d, v%d, v%d' % (d + 1, Uu + 2, Uu + 3),
            'buffer_store_dwordx2 %s, v%d, s[%d:%d], s%d offen offset:%d' % (v(d, 2), vX, sG, sG + 3, so3, m * 1024))
    k.label(END)
    k.e('s_endpgm')
    return k, lds_bytes

from gen_p1 import gen_p1

def build(path, which=('p1', 'p2', 'p3', 'p4')):
    ks = []
    for w in which:
        ks.append(gen_p1() if w == 'p1' else gen_p3() if w == 'p3' else gen_small(w))
    hdr = [l.rstrip('\n') for l in open('cdna_kernels/%s.s.ref' % NAME) if l.startswith(';') and '@launch' not in l
           and 'Override launch' not in l and 'grid=ceil' not in l]
    out = hdr[:]
    for k, lds in ks:
        out.append('; @launch kernel=%s grid=(256,1,1) block=(256,1,1) lds=%d' % (k.name, lds))
    out += ['.amdgcn_target "amdgcn-amd-amdhsa--gfx950"', '.text']
    for k, lds in ks: out.append(k.text())
    out.append('.section .rodata,"a"')
    for k, lds in ks: out.append(k.descriptor())
    open(path, 'w').write('\n'.join(out))
    for k, lds in ks:
        print('%s: v%d a%d s%d nops=%d lds=%d instrs=%d' % (k.name, k.maxv + 1, k.maxa + 1, k.maxs + 1, k.nops, lds, len(k.items)))

if __name__ == '__main__':
    for kv in sys.argv[2:]:
        a_, b_ = kv.split('='); CFG[a_] = int(b_)
    build(sys.argv[1] if len(sys.argv) > 1 else 'cdna_kernels/%s.s' % NAME)
```
